```python
import torch

def _softmax(x, axis=-1):
    return torch.softmax(x, dim=axis)
def _gelu(x):
    return torch.nn.functional.gelu(x, approximate="tanh")
def _silu(x):
    return torch.nn.functional.silu(x)
def _sigmoid(x):
    return torch.sigmoid(x)
def _layernorm(x, axis=-1, eps=1e-5):
    m = x.mean(dim=axis, keepdim=True)
    v = x.var(dim=axis, keepdim=True, unbiased=False)
    return (x - m) / torch.sqrt(v + eps)
def _scatter_add(tgt, idx, src, axis=0):
    return tgt.clone().index_add_(axis, idx, src)
def _segment_sum(src, seg, n):
    out = torch.zeros((n,) + src.shape[1:], dtype=src.dtype)
    return out.index_add_(0, seg, src)
def _pad(x, pw):
    flat = tuple(v for pair in reversed(pw) for v in pair)
    return torch.nn.functional.pad(x, flat)

kernel_name = 'sequential_preLN__spectral_gfnet__glu_gated_reglu__prompt'

def setup_inputs():

    _w = (lambda a: (lambda t: t.to(torch.bfloat16) if t.is_floating_point() else t)(torch.as_tensor(a)))
    def _A_setup():
        B, S, D = 1, 2048, 512
        Df = D // 2 + 1
        return {
            "x": _w((lambda *s: torch.randn(*s, dtype=torch.bfloat16) * 0.05)(B, S, D)),
            "w_r": _w((lambda *s: torch.randn(*s, dtype=torch.bfloat16) * 0.4)(S, Df) * 0.02),
            "w_i": _w((lambda *s: torch.randn(*s, dtype=torch.bfloat16) * 0.4)(S, Df) * 0.02),
        }
    _A_in = _A_setup()

    def _B_setup():
        B, S, D, F = 1, 2048, 512, 1792
        return {
            "x": _w((lambda *s: torch.randn(*s, dtype=torch.bfloat16) * 0.05)(B, S, D)),
            "W_gate": _w((lambda *s: torch.randn(*s, dtype=torch.bfloat16) * 0.2)(D, F) * (2.0 / D) ** 0.5),
            "W_up": _w((lambda *s: torch.randn(*s, dtype=torch.bfloat16) * 0.2)(D, F) * (2.0 / D) ** 0.5),
            "W_down": _w((lambda *s: torch.randn(*s, dtype=torch.bfloat16) * 0.2)(F, D) * (1.0 / F) ** 0.5),
        }
    _B_in = _B_setup()

    return {
        "A_x": _A_in["x"],
        "A_w_r": _A_in["w_r"],
        "A_w_i": _A_in["w_i"],
        "B_x": _B_in["x"],
        "B_W_gate": _B_in["W_gate"],
        "B_W_up": _B_in["W_up"],
        "B_W_down": _B_in["W_down"],
    }

def reference(A_x, A_w_r, A_w_i, B_x, B_W_gate, B_W_up, B_W_down):
    def _A_ref(x, w_r, w_i):
        B, S, D = x.shape
        X = (lambda x, axes=(-2,-1): torch.fft.rfft2(x.float(), dim=axes))(x, axes=(-2, -1))
        W = w_r + 1j * w_i
        X = X * W
        y = (lambda x, s, axes=(-2,-1): torch.fft.irfft2(x, s=s, dim=axes).to(torch.bfloat16))(X, (S, D), axes=(-2, -1))
        return y

    def _B_ref(x, W_gate, W_up, W_down):
        gate = torch.einsum("bsd,df->bsf", x, W_gate)
        up = torch.einsum("bsd,df->bsf", x, W_up)
        gate = gate * (lambda x, dt: x.to(dt))(gate > 0, gate.dtype)
        h = gate * up
        return torch.einsum("bsf,fd->bsd", h, W_down)

    x = A_x
    h = x + _A_ref(_layernorm(x, axis=-1), A_w_r, A_w_i)
    h2 = h + _B_ref(_layernorm(h, axis=-1), B_W_gate, B_W_up, B_W_down)
    return h2
```

```python
import re

REG_RE = re.compile(r'^(-?)(\|?)(abs\()?([vas])(\d+|\[(\d+):(\d+)\])(\))?(\|?)$')

def parse_reg(tok):
    t = tok.strip()
    if t in ('vcc',): return [('s', 'vcc_lo'), ('s', 'vcc_hi')]
    if t in ('vcc_lo', 'vcc_hi'): return [('s', t)]
    if t == 'exec': return [('s', 'exec_lo'), ('s', 'exec_hi')]
    if t in ('exec_lo', 'exec_hi'): return [('s', t)]
    if t == 'm0': return [('s', 'm0')]
    if t == 'scc': return [('s', 'scc')]
    m = REG_RE.match(t)
    if not m: return []
    kind = m.group(4)
    if m.group(6) is not None:
        lo, hi = int(m.group(6)), int(m.group(7))
        return [(kind, i) for i in range(lo, hi + 1)]
    return [(kind, int(m.group(5)))]

TRANS = ('v_exp_f32', 'v_log_f32', 'v_rcp_f32', 'v_rsq_f32', 'v_sqrt_f32', 'v_sin_f32', 'v_cos_f32',
         'v_rcp_iflag_f32', 'v_rcp_f16', 'v_rsq_f16', 'v_sin_f16', 'v_cos_f16', 'v_exp_f16', 'v_log_f16')

def split_ops(s):
    out, depth, cur = [], 0, ''
    for ch in s:
        if ch in '[(': depth += 1
        if ch in '])': depth -= 1
        if ch == ',' and depth == 0:
            out.append(cur.strip()); cur = ''
        else:
            cur += ch
    if cur.strip(): out.append(cur.strip())
    return out

class Ins:
    __slots__ = ('text', 'mn', 'ops', 'mods', 'w', 'r', 'cls', 'passes', 'srcC', 'srcAB', 'label', 'target',
                 'dpp', 'store_wide', 'data', 'nop', 'comment')
    def __init__(self, text):
        self.text = text
        self.label = None; self.target = None
        self.w = set(); self.r = set(); self.cls = 'other'; self.passes = 0
        self.srcC = set(); self.srcAB = set(); self.dpp = False; self.store_wide = False; self.data = set()
        self.nop = 0
        t = text.split(';')[0].strip()
        if not t:
            self.cls = 'empty'; self.mn = ''; return
        if t.endswith(':'):
            self.cls = 'label'; self.label = t[:-1]; self.mn = ''; return
        if t.startswith('.'):
            self.cls = 'directive'; self.mn = ''; return
        parts = t.split(None, 1)
        mn = parts[0]; self.mn = mn
        rest = parts[1] if len(parts) > 1 else ''
        ops = split_ops(rest)
        mods = ''
        if ops:
            last = ops[-1]
            sp = last.split(None, 1)
            ops[-1] = sp[0]
            if len(sp) > 1: mods = sp[1]
        self.ops = ops; self.mods = mods
        base = re.sub(r'_(e32|e64|dpp|sdwa)$', '', mn)
        R = lambda i: set(parse_reg(ops[i])) if i < len(ops) else set()
        allsrc = lambda start: set().union(*[R(i) for i in range(start, len(ops))]) if len(ops) > start else set()
        if mn.startswith('v_mfma') or mn.startswith('v_smfmac'):
            self.cls = 'mfma'
            self.w = R(0); self.srcAB = R(1) | R(2); self.srcC = R(3); self.r = self.srcAB | self.srcC
            if '16x16x32' in mn or '16x16x16' in mn: self.passes = 4
            elif '32x32x16' in mn or '32x32x8' in mn: self.passes = 8
            elif '16x16x4_f32' in mn: self.passes = 8; self.cls = 'sgemm'
            elif '32x32x2_f32' in mn: self.passes = 16; self.cls = 'sgemm'
            elif '4x4x4' in mn: self.passes = 2
            else: raise ValueError('unknown mfma ' + mn)
        elif mn.startswith('v_'):
            self.cls = 'valu'
            if base in TRANS: self.cls = 'trans'
            self.dpp = ('dpp' in mn) or any(k in mods for k in ('quad_perm', 'row_shl', 'row_shr', 'row_ror', 'wave_', 'row_mirror', 'row_half_mirror', 'row_bcast', 'row_newbcast'))
            if base.startswith('v_cmpx'):
                self.w = R(0) | {('s', 'exec_lo'), ('s', 'exec_hi')}; self.r = allsrc(1)
            elif base.startswith('v_cmp'):
                self.w = R(0); self.r = allsrc(1)
            elif base.startswith('v_permlane') and 'swap' in base:
                self.w = R(0) | R(1); self.r = R(0) | R(1); self.cls = 'permlane'
            elif base in ('v_readlane_b32', 'v_readfirstlane_b32'):
                self.w = R(0); self.r = allsrc(1); self.cls = 'readlane'
            elif base == 'v_writelane_b32':
                self.w = R(0); self.r = allsrc(1) | R(0); self.cls = 'writelane'
            elif base in ('v_add_co_u32', 'v_sub_co_u32', 'v_subrev_co_u32'):
                self.w = R(0) | R(1); self.r = allsrc(2)
            elif base in ('v_addc_co_u32', 'v_subb_co_u32', 'v_subbrev_co_u32'):
                self.w = R(0) | R(1); self.r = allsrc(2)
            elif base == 'v_mad_u64_u32':
                self.w = R(0) | R(1); self.r = allsrc(2)
            elif base == 'v_cndmask_b32':
                self.w = R(0); self.r = allsrc(1)
                if len(ops) == 3: self.r |= set(parse_reg('vcc'))
            elif base == 'v_swap_b32':
                self.w = R(0) | R(1); self.r = R(0) | R(1)
            else:
                self.w = R(0); self.r = allsrc(1)
                if base.startswith(('v_fmac', 'v_pk_fmac', 'v_mac', 'v_dot2c', 'v_fmamk', 'v_fmaak')) and base.startswith(('v_fmac', 'v_pk_fmac', 'v_mac', 'v_dot2c')):
                    self.r |= R(0)
                if self.dpp or 'sdwa' in mn or 'd16' in mn: self.r |= R(0)
                if base == 'v_accvgpr_write_b32' or base == 'v_accvgpr_read_b32' or base == 'v_accvgpr_mov_b32':
                    pass
        elif mn.startswith('ds_'):
            self.cls = 'ds'
            if mn.startswith(('ds_read', 'ds_bpermute', 'ds_permute', 'ds_swizzle')):
                self.w = R(0); self.r = allsrc(1)
                if 'd16' in mn: self.r |= R(0)
            elif mn.startswith('ds_write'):
                self.r = allsrc(0); self.data = allsrc(1)
            else:
                self.r = allsrc(0)
                if 'rtn' in mn: self.w = R(0); self.r = allsrc(1)
        elif mn.startswith('buffer_'):
            self.cls = 'vmem'
            lds = bool(re.search(r'\blds\b', mods))
            if mn.startswith('buffer_load'):
                if lds:
                    self.r = allsrc(0) | {('s', 'm0')}; self.cls = 'vmem_lds'
                else:
                    self.w = R(0); self.r = allsrc(1)
                    if 'd16' in mn: self.r |= R(0)
            elif mn.startswith('buffer_store'):
                self.r = allsrc(0); self.data = R(0)
                self.store_wide = ('x4' in mn or 'x3' in mn)
            elif mn.startswith('buffer_atomic'):
                self.r = allsrc(0); self.data = R(0)
                if 'sc0' in mods: self.w = R(0)
            else:
                self.r = allsrc(0)
        elif mn.startswith('global_'):
            self.cls = 'vmem'
            if mn.startswith('global_load_lds'):
                self.r = allsrc(0) | {('s', 'm0')}; self.cls = 'vmem_lds'
            elif mn.startswith('global_load'):
                self.w = R(0); self.r = allsrc(1)
                if 'd16' in mn: self.r |= R(0)
            elif mn.startswith('global_store'):
                self.r = allsrc(0); self.data = R(1)
                self.store_wide = ('x4' in mn or 'x3' in mn)
            elif mn.startswith('global_atomic'):
                if 'sc0' in mods:
                    self.w = R(0); self.r = allsrc(1)
                else:
                    self.r = allsrc(0)
        elif mn.startswith('s_'):
            self.cls = 'salu'
            if mn == 's_nop':
                self.cls = 'nop'; self.nop = int(ops[0], 0) + 1
            elif mn in ('s_waitcnt', 's_barrier', 's_endpgm', 's_setprio', 's_sleep', 's_sethalt'):
                self.cls = 'ctl'
            elif mn.startswith('s_cbranch') or mn == 's_branch':
                self.cls = 'branch'; self.target = ops[0]
                if 'vcc' in mn: self.r = set(parse_reg('vcc'))
                if 'exec' in mn: self.r = set(parse_reg('exec'))
            elif mn.startswith(('s_load', 's_buffer_load', 's_memtime', 's_memrealtime')):
                self.cls = 'smem'; self.w = R(0); self.r = allsrc(1)
            elif mn.startswith('s_cmp') or mn.startswith('s_bitcmp'):
                self.r = allsrc(0)
            elif 'saveexec' in mn:
                self.w = R(0) | set(parse_reg('exec')); self.r = allsrc(1) | set(parse_reg('exec'))
            else:
                self.w = R(0); self.r = allsrc(1)
                if mn in ('s_addk_i32', 's_mulk_i32', 's_cmov_b32', 's_cmov_b64'): self.r |= R(0)
        else:
            raise ValueError('cannot parse: ' + text)

    @property
    def is_valu(self):
        return self.cls in ('valu', 'trans', 'permlane', 'readlane', 'writelane')
    @property
    def is_ins(self):
        return self.cls not in ('empty', 'label', 'directive')

def vonly(s): return {x for x in s if x[0] in 'va'}
def sonly(s): return {x for x in s if x[0] == 's'}

def required(p, c):
    need = 0
    pv = vonly(p.w); ps = sonly(p.w)
    if p.is_valu:
        if c.cls in ('mfma', 'sgemm') and pv & c.r: need = max(need, 2)
        if c.is_valu and c.dpp and pv & c.r: need = max(need, 2)
        if c.cls == 'permlane' and pv & c.r: need = max(need, 2)
        if c.cls == 'readlane' and pv & vonly(c.r): need = max(need, 1)
        if c.cls in ('vmem', 'vmem_lds') and ps & c.r: need = max(need, 5)
        if c.is_valu and ps & c.r:
            need = max(need, 4 if c.cls in ('readlane', 'writelane') else 2)
        if c.cls in ('salu', 'branch') and ps & c.r: need = max(need, 1)
        if p.cls == 'trans' and c.is_valu and c.cls != 'trans' and pv & (c.r | c.w): need = max(need, 1)
        if p.cls == 'trans' and c.cls in ('vmem','ds','vmem_lds') and pv & c.r: need = max(need, 1)
        ex = {('s', 'exec_lo'), ('s', 'exec_hi')}
        if ps & ex:
            if c.dpp: need = max(need, 5)
            if c.cls in ('readlane', 'writelane', 'permlane', 'mfma', 'sgemm'): need = max(need, 4)
        if 'sdwa' in p.mn and c.is_valu and pv & (c.r | c.w): need = max(need, 1)
    if p.cls == 'mfma':
        P = p.passes
        d = p.w
        if c.cls == 'mfma':
            if c.srcC & d:
                if c.srcC == d and c.passes == P: need = max(need, 2 if P == 2 else 0)
                else: need = max(need, {2: 4, 4: 6, 8: 10, 16: 18}[P])
            if c.srcAB & d: need = max(need, {2: 5, 4: 8, 8: 12, 16: 20}[P])
            if (c.w & d) and not (c.srcC & d):
                need = max(need, {2: 5, 4: 8, 8: 12, 16: 20}[P])
        elif c.cls == 'sgemm':
            if c.srcC & d: need = max(need, {2: 3, 4: 6, 8: 10, 16: 18}[P])
            if c.srcAB & d: need = max(need, {2: 5, 4: 8, 8: 12, 16: 20}[P])
        elif c.is_valu or c.cls in ('vmem', 'ds', 'vmem_lds'):
            if d & (c.r | c.w): need = max(need, {2: 5, 4: 8, 8: 12, 16: 20}[P])
        if c.is_valu and (p.srcC & c.w): need = max(need, {2: 1, 4: 3, 8: 7, 16: 15}[P])
    if p.cls == 'sgemm':
        P = p.passes; d = p.w
        if c.cls == 'sgemm':
            if c.srcC & d and not (c.srcC == d and c.passes == P): need = max(need, {8: 8, 16: 16}[P])
            if c.srcAB & d: need = max(need, {8: 10, 16: 18}[P])
        elif c.cls == 'mfma':
            if c.srcAB & d: need = max(need, {8: 10, 16: 18}[P])
        elif c.is_valu or c.cls in ('vmem', 'ds', 'vmem_lds'):
            if d & (c.r | c.w): need = max(need, {8: 10, 16: 18}[P])
    if p.cls == 'vmem' and p.store_wide:
        if c.is_valu and p.data & c.w: need = max(need, 2)
        elif p.data & c.w: need = max(need, 1)
    if p.cls == 'salu' and ('s', 'm0') in p.w and c.cls == 'vmem_lds': need = max(need, 1)
    return need

MAXLOOK = 22

def insert_nops(lines):
    ins = [Ins(l) for l in lines]
    n = len(ins)
    labels = {x.label: i for i, x in enumerate(ins) if x.cls == 'label'}
    branches_to = {}
    for i, x in enumerate(ins):
        if x.cls == 'branch':
            if x.target not in labels: raise ValueError('unknown label ' + x.target)
            branches_to.setdefault(labels[x.target], []).append(i)
    extra = [0] * n
    def preds(i):
        out = []
        j = i - 1
        if j >= 0:
            x = ins[j]
            if not (x.mn == 's_branch' or x.mn == 's_endpgm'):
                out.append(j)
        if ins[i].cls == 'label':
            out += branches_to.get(i, [])
        return out
    total = 0
    changed = True
    while changed:
        changed = False
        for i, c in enumerate(ins):
            if not c.is_ins or c.cls in ('nop', 'ctl', 'branch') and not c.r: continue
            need_extra = 0
            stack = [(p, extra[i]) for p in preds(i)]
            seen = {}
            while stack:
                j, dist = stack.pop()
                if dist >= MAXLOOK: continue
                if seen.get(j, 99) <= dist: continue
                seen[j] = dist
                x = ins[j]
                if x.is_ins:
                    rq = required(x, c)
                    if rq > dist: need_extra = max(need_extra, rq - dist)
                    nd = dist + (x.nop if x.cls == 'nop' else 1) + extra[j]
                else:
                    nd = dist + extra[j]
                for p in preds(j): stack.append((p, nd))
            if need_extra:
                extra[i] += need_extra; total += need_extra; changed = True
    out = []
    for i, x in enumerate(ins):
        e = extra[i]
        while e > 0:
            k = min(e, 16)
            out.append(f'    s_nop {k-1}')
            e -= k
        out.append(x.text)
    return out, total

class Asm:
    def __init__(self):
        self.lines = []
    def __call__(self, s):
        for l in s.split('\n'):
            l = l.rstrip()
            if l.strip(): self.lines.append(l if l.strip().endswith(':') else '    ' + l.strip())
    def label(self, name): self.lines.append(name + ':')
    def finish(self, verbose=False):
        out, tot = insert_nops(self.lines)
        if verbose: print('nops inserted:', tot)
        return out
```

```python
from kgen import *

def gen_A(name="ka_kernel"):
    a = Asm()
    V = Regs('v', 1, 256); S = Regs('s', 3, 100)
    tid = R('v', 0, 1)
    wg = R('s', 2, 1)
    sX = S.alloc(2); sWR = S.alloc(2); sWI = S.alloc(2); sWS = S.alloc(2)
    rX = S.alloc(4, 4); rWR = S.alloc(4, 4); rWI = S.alloc(4, 4); rZT = S.alloc(4, 4); rWT = S.alloc(4, 4)
    sw = S.alloc(1); slot = S.alloc(1); st = S.alloc(1); st2 = S.alloc(1); sxoff = S.alloc(1)
    sp = S.alloc(8)
    smean = S.alloc(2); srstd = S.alloc(2); sex = S.alloc(2); szoff = S.alloc(1); szoff2 = S.alloc(1); sp0 = S.alloc(1)
    a(f"s_cmp_ge_u32 {wg}, 256")
    a("s_cbranch_scc1 A_done")
    a(f"s_load_dwordx2 {sX}, s[0:1], {KA_X}")
    a(f"s_load_dwordx4 s[{sWR.base}:{sWR.base+3}], s[0:1], {KA_WR}") if sWR.base % 4 == 0 else (
        a(f"s_load_dwordx2 {sWR}, s[0:1], {KA_WR}"), a(f"s_load_dwordx2 {sWI}, s[0:1], {KA_WI}"))
    a(f"s_load_dwordx2 {sWS}, s[0:1], {KA_WS}")
    n = V.alloc(1); q = V.alloc(1); fn = V.alloc(1); fq = V.alloc(1); lane = V.alloc(1)
    a(f"v_lshrrev_b32 {q}, 6, {tid}")
    a(f"v_readfirstlane_b32 {sw}, {q}")
    a(f"v_and_b32 {lane}, 63, {tid}")
    a(f"v_and_b32 {n}, 15, {tid}")
    a(f"v_lshrrev_b32 {q}, 4, {lane}")
    a(f"v_cvt_f32_u32 {fn}, {n}")
    a(f"v_cvt_f32_u32 {fq}, {q}")
    a(f"s_and_b32 {st}, {wg}, 7")
    a(f"s_lshl_b32 {st}, {st}, 5")
    a(f"s_lshr_b32 {st2}, {wg}, 3")
    a(f"s_add_u32 {slot}, {st}, {st2}")
    a(f"s_lshr_b32 {st}, {slot}, 7")
    a(f"s_lshl_b32 {sxoff}, {st}, 9")
    a(f"s_bfe_u32 {st}, {slot}, 0x20004")
    a(f"s_lshl_b32 {st}, {st}, 7")
    a(f"s_add_u32 {sxoff}, {sxoff}, {st}")
    a(f"s_lshl_b32 {st}, {sw}, 5")
    a(f"s_add_u32 {sxoff}, {sxoff}, {st}")
    a(f"s_bfe_u32 {st}, {slot}, 0x10006")
    a(f"s_lshl_b32 {st}, {st}, 4")
    a(f"s_add_u32 {sxoff}, {sxoff}, {st}")
    a(f"s_and_b32 {st}, {slot}, 15")
    a(f"s_add_u32 {sxoff}, {sxoff}, {st}")
    a(f"s_lshl_b32 {sxoff}, {sxoff}, 11")
    a(f"s_bfe_u32 {st}, {slot}, 0x10004")
    a(f"s_lshl_b32 {sp0}, {st}, 10")
    a(f"s_bfe_u32 {st}, {slot}, 0x10005")
    a(f"s_lshl_b32 {st}, {st}, 9")
    a(f"s_add_u32 {sp0}, {sp0}, {st}")
    a(f"s_bfe_u32 {st}, {slot}, 0x20002")
    a(f"s_lshl_b32 {st}, {st}, 7")
    a(f"s_add_u32 {sp0}, {sp0}, {st}")
    a(f"s_lshr_b32 {st}, {slot}, 6")
    a(f"s_lshl_b32 {st}, {st}, 3")
    a(f"s_add_u32 {sp0}, {sp0}, {st}")
    a(f"s_and_b32 {st}, {slot}, 3")
    a(f"s_lshl_b32 {st}, {st}, 1")
    a(f"s_add_u32 {sp0}, {sp0}, {st}")
    a(f"s_mul_i32 {sp[0]}, {sp0}, 514")
    for d in range(2):
        for r in range(4):
            j = 4 * d + r
            if j: a(f"s_add_u32 {sp[j]}, {sp[0]}, {514 * (32 * r + d)}")
    vx = V.alloc(1); vwk = V.alloc(1); vt = V.alloc(1); vt2 = V.alloc(1)
    a(f"v_lshlrev_b32 {vx}, 8, {q}")
    a(f"v_lshl_add_u32 {vx}, {n}, 2, {vx}")
    a(f"v_lshlrev_b32 {vwk}, 1, {tid}")
    a("s_waitcnt lgkmcnt(0)")
    srd(a, rX, sX, 0, SZ_X)
    xa = V.alloc(4); xb = V.alloc(4)
    for jj in range(4):
        a(f"buffer_load_dword {xa[jj]}, {vx}, {rX}, {sxoff} offen offset:{64 * jj}")
    for jj in range(4):
        a(f"buffer_load_dword {xb[jj]}, {vx}, {rX}, {sxoff} offen offset:{1024 + 64 * jj}")
    srd(a, rWR, sWR, 0, SZ_W)
    srd(a, rWI, sWI, 0, SZ_W)
    wr = V.alloc(8, 4); wi = V.alloc(8, 4)
    for j in range(8):
        a(f"buffer_load_ushort {wr[j]}, {vwk}, {rWR}, {sp[j]} offen")
        a(f"buffer_load_ushort {wi[j]}, {vwk}, {rWI}, {sp[j]} offen")
    xw = V.alloc(4); vsp = V.alloc(1); vsn = V.alloc(1); vso = V.alloc(1)
    sxm = S.alloc(2)
    a(f"v_mov_b32 {vso}, 0")
    a(f"s_cmp_eq_u32 {sw}, 3")
    a("s_cbranch_scc0 A_nospec1")
    a(f"v_and_b32 {vt}, 3, {lane}")
    a(f"v_lshlrev_b32 {vt}, 5, {vt}")
    a(f"v_bfe_u32 {vt2}, {lane}, 2, 1")
    a(f"v_add3_u32 {vt}, {vt}, {vt2}, {sp0}")
    a(f"v_sub_u32 {vsn}, 0x800, {vt}")
    a(f"v_and_b32 {vsn}, 0x7ff, {vsn}")
    a(f"v_mul_u32_u24 {vsp}, 514, {vt}")
    a(f"v_mul_u32_u24 {vsn}, 514, {vsn}")
    a(f"v_bfe_u32 {vt2}, {lane}, 3, 1")
    a(f"v_lshlrev_b32 {vt}, 9, {vt2}")
    a(f"v_add_u32 {vsp}, {vsp}, {vt}")
    a(f"v_add_u32 {vsn}, {vsn}, {vt}")
    a(f"v_lshlrev_b32 {vso}, 21, {vt2}")
    a(f"v_and_b32 {vt}, 7, {lane}")
    a(f"v_lshl_add_u32 {vso}, {vt}, 2, {vso}")
    a(f"s_lshl_b32 {st}, {slot}, 5")
    a(f"v_add_u32 {vso}, {st}, {vso}")
    a(f"s_mov_b64 {sxm}, exec")
    a(f"s_mov_b64 exec, 0xffff")
    a(f"buffer_load_ushort {xw[0]}, {vsp}, {rWR}, 0 offen")
    a(f"buffer_load_ushort {xw[1]}, {vsp}, {rWI}, 0 offen")
    a(f"buffer_load_ushort {xw[2]}, {vsn}, {rWR}, 0 offen")
    a(f"buffer_load_ushort {xw[3]}, {vsn}, {rWI}, 0 offen")
    a(f"s_mov_b64 exec, {sxm}")
    a.label("A_nospec1")
    srd(a, rZT, sWS, WS_ZT, SZ_ZT)
    srd(a, rWT, sWS, WS_WT, SZ_WT)
    ang = V.alloc(1); dl = V.alloc(1); c = V.alloc(1); s = V.alloc(1)
    F16r = V.alloc(4, 4); F16i = V.alloc(4, 4)
    a(f"v_mul_f32 {dl}, {fl(1/16)}, {fn}")
    a(f"v_mul_f32 {ang}, {fn}, {fq}")
    a(f"v_mul_f32 {ang}, {fl(0.25)}, {ang}")
    for jj in range(4):
        cos_sin(a, c, s, ang)
        if jj < 3: a(f"v_add_f32 {ang}, {ang}, {dl}")
        a(f"v_cvt_pk_bf16_f32 {F16r[jj]}, {c}, {s}")
        a(f"v_cvt_pk_bf16_f32 {F16i[jj]}, -{s}, {c}")
    twc = [V.alloc(4), V.alloc(4)]; tws = [V.alloc(4), V.alloc(4)]
    base = V.alloc(1)
    a(f"v_mul_f32 {dl}, {fl(1/512)}, {fn}")
    a(f"v_mul_f32 {base}, {fl(8.0)}, {fq}")
    a(f"v_mul_f32 {base}, {base}, {dl}")
    for u in range(2):
        for r in range(4):
            k = 2 * r + u
            if k == 0: a(f"v_mov_b32 {ang}, {base}")
            else:
                a(f"v_mov_b32 {ang}, {fl(float(k))}")
                a(f"v_fma_f32 {ang}, {ang}, {dl}, {base}")
            cos_sin(a, twc[u][r], tws[u][r], ang)
    F32 = {}
    a(f"v_mul_f32 {dl}, {fl(1/32)}, {fn}")
    a(f"v_mul_f32 {base}, {fl(8.0)}, {fq}")
    a(f"v_mul_f32 {base}, {base}, {dl}")
    for u in range(2):
        F32[(0, u, 0)] = V.alloc(4, 4); F32[(0, u, 1)] = V.alloc(4, 4)
        for jj in range(4):
            k = 2 * jj + u
            if k == 0: a(f"v_mov_b32 {ang}, {base}")
            else:
                a(f"v_mov_b32 {ang}, {fl(float(k))}")
                a(f"v_fma_f32 {ang}, {ang}, {dl}, {base}")
            cos_sin(a, c, s, ang)
            a(f"v_cvt_pk_bf16_f32 {F32[(0,u,0)][jj]}, {c}, {s}")
            a(f"v_cvt_pk_bf16_f32 {F32[(0,u,1)][jj]}, -{s}, {c}")
    F32[(1, 0, 0)] = F32[(0, 0, 0)]; F32[(1, 0, 1)] = F32[(0, 0, 1)]
    for cc in range(2):
        F32[(1, 1, cc)] = V.alloc(4, 4)
        for jj in range(4):
            a(f"v_xor_b32 {F32[(1,1,cc)][jj]}, 0x80008000, {F32[(0,1,cc)][jj]}")
    vlw = V.alloc(1); vlr = V.alloc(1); vzo = V.alloc(1); vwo = V.alloc(1)
    a(f"v_lshlrev_b32 {vlw}, 8, {q}")
    a(f"v_lshl_add_u32 {vlw}, {n}, 2, {vlw}")
    a(f"s_lshl_b32 {st}, {sw}, 11")
    a(f"v_add_u32 {vlw}, {st}, {vlw}")
    a(f"v_lshlrev_b32 {vlr}, 2, {tid}")
    a(f"v_lshlrev_b32 {vzo}, 12, {tid}")
    a(f"s_lshl_b32 {szoff}, {slot}, 4")
    a(f"s_add_u32 {szoff2}, {szoff}, {256 * 4096}")
    a(f"v_lshlrev_b32 {vwo}, 13, {tid}")
    a("s_waitcnt vmcnt(16)")
    e = V.alloc(16)
    for jj in range(4):
        a(f"v_lshlrev_b32 {e[4*jj+0]}, 16, {xa[jj]}")
        a(f"v_lshlrev_b32 {e[4*jj+1]}, 16, {xb[jj]}")
        a(f"v_and_b32 {e[4*jj+2]}, 0xffff0000, {xa[jj]}")
        a(f"v_and_b32 {e[4*jj+3]}, 0xffff0000, {xb[jj]}")
    sm = V.alloc(2); t2 = V.alloc(2)
    a(f"v_pk_add_f32 {sm}, {e[0:2]}, {e[2:4]}")
    a(f"v_pk_add_f32 {t2}, {e[4:6]}, {e[6:8]}")
    for j in range(4, 8, 2):
        a(f"v_pk_add_f32 {sm}, {sm}, {e[2*j:2*j+2]}")
        a(f"v_pk_add_f32 {t2}, {t2}, {e[2*j+2:2*j+4]}")
    a(f"v_pk_add_f32 {sm}, {sm}, {t2}")
    wave_reduce_sum(a, [sm[0], sm[1]])
    a(f"v_mul_f32 {sm[0]}, {fl(1/512)}, {sm[0]}")
    a(f"v_mul_f32 {sm[1]}, {fl(1/512)}, {sm[1]}")
    a(f"v_readlane_b32 {smean[0]}, {sm[0]}, 63")
    a(f"v_readlane_b32 {smean[1]}, {sm[1]}, 63")
    for j in range(8):
        a(f"v_pk_add_f32 {e[2*j:2*j+2]}, {e[2*j:2*j+2]}, {smean} neg_lo:[0,1] neg_hi:[0,1]")
    a(f"v_pk_mul_f32 {sm}, {e[0:2]}, {e[0:2]}")
    a(f"v_pk_mul_f32 {t2}, {e[2:4]}, {e[2:4]}")
    for j in range(2, 8, 2):
        a(f"v_pk_fma_f32 {sm}, {e[2*j:2*j+2]}, {e[2*j:2*j+2]}, {sm}")
        a(f"v_pk_fma_f32 {t2}, {e[2*j+2:2*j+4]}, {e[2*j+2:2*j+4]}, {t2}")
    a(f"v_pk_add_f32 {sm}, {sm}, {t2}")
    wave_reduce_sum(a, [sm[0], sm[1]])
    a(f"v_mov_b32 {vt}, {fl(1e-5)}")
    a(f"v_mov_b32 {vt2}, {fl(1/512)}")
    a(f"v_fma_f32 {sm[0]}, {sm[0]}, {vt2}, {vt}")
    a(f"v_fma_f32 {sm[1]}, {sm[1]}, {vt2}, {vt}")
    a(f"v_rsq_f32 {sm[0]}, {sm[0]}")
    a(f"v_rsq_f32 {sm[1]}, {sm[1]}")
    a(f"v_readlane_b32 {srstd[0]}, {sm[0]}, 63")
    a(f"v_readlane_b32 {srstd[1]}, {sm[1]}, 63")
    for j in range(8):
        a(f"v_pk_mul_f32 {e[2*j:2*j+2]}, {e[2*j:2*j+2]}, {srstd}")
    z = [V.alloc(4, 4), V.alloc(4, 4)]
    for u in range(2):
        for jj in range(4):
            j = 2 * jj + u
            a(f"v_cvt_pk_bf16_f32 {z[u][jj]}, {e[2*j]}, {e[2*j+1]}")
    D = {(u, cc): V.alloc(4, 4) for u in range(2) for cc in range(2)}
    for u in range(2):
        mfma(a, D[(u, 0)], z[u], F16r, 0)
        mfma(a, D[(u, 1)], z[u], F16i, 0)
    T = {(u, cc): V.alloc(4, 4) for u in range(2) for cc in range(2)}
    for u in range(2):
        for h in range(2):
            cmul_pk(a, T[(u,0)][2*h:2*h+2], T[(u,1)][2*h:2*h+2], D[(u,0)][2*h:2*h+2], D[(u,1)][2*h:2*h+2],
                    twc[u][2*h:2*h+2], tws[u][2*h:2*h+2])
    for u in range(2):
        for r in range(4):
            a(f"v_cvt_pk_bf16_f32 {z[u][r]}, {T[(u,0)][r]}, {T[(u,1)][r]}")
    for w in range(2):
        for cc in range(2):
            mfma(a, D[(w, cc)], F32[(w, 0, cc)], z[0], 0)
    for w in range(2):
        for cc in range(2):
            mfma(a, D[(w, cc)], F32[(w, 1, cc)], z[1], D[(w, cc)])
    a("s_waitcnt vmcnt(0)")
    for j in range(8):
        a(f"v_lshl_or_b32 {wr[j]}, {wi[j]}, 16, {wr[j]}")
    o = V.alloc(8)
    for w in range(2):
        for r in range(4):
            a(f"v_cvt_pk_bf16_f32 {o[4*w+r]}, {D[(w,0)][r]}, {D[(w,1)][r]}")
    for w in range(2):
        for r in range(4):
            a(f"ds_write_b32 {vlw}, {o[4*w+r]} offset:{64*r + 1024*w}")
    a(f"s_lshl_b32 {st}, {slot}, 5")
    a(f"v_cmp_ne_u32 vcc, 0, {tid}")
    a(f"s_and_saveexec_b64 {sxm}, vcc")
    a(f"buffer_store_dwordx4 {wr[0:4]}, {vwo}, {rWT}, {st} offen")
    a(f"buffer_store_dwordx4 {wr[4:8]}, {vwo}, {rWT}, {st} offen offset:16")
    a(f"s_mov_b64 exec, {sxm}")
    a(f"s_cmp_eq_u32 {sw}, 3")
    a("s_cbranch_scc0 A_nospec2")
    for j in range(4):
        a(f"v_lshlrev_b32 {xw[j]}, 16, {xw[j]}")
    a(f"v_add_f32 {xw[0]}, {xw[0]}, {xw[2]}")
    a(f"v_sub_f32 {xw[1]}, {xw[1]}, {xw[3]}")
    a(f"v_mul_f32 {xw[0]}, 0.5, {xw[0]}")
    a(f"v_mul_f32 {xw[1]}, 0.5, {xw[1]}")
    a(f"v_cvt_pk_bf16_f32 {xw[0]}, {xw[0]}, {xw[1]}")
    a(f"s_mov_b64 exec, 0xffff")
    a(f"buffer_store_dword {xw[0]}, {vso}, {rWT}, 0 offen")
    a(f"s_mov_b64 exec, {sxm}")
    a.label("A_nospec2")
    a("s_waitcnt lgkmcnt(0)")
    a("s_barrier")
    g0 = V.alloc(4, 4); g1 = V.alloc(4, 4)
    a(f"ds_read2st64_b32 {g0[0:2]}, {vlr} offset0:0 offset1:8")
    a(f"ds_read2st64_b32 {g0[2:4]}, {vlr} offset0:16 offset1:24")
    a(f"ds_read2st64_b32 {g1[0:2]}, {vlr} offset0:4 offset1:12")
    a(f"ds_read2st64_b32 {g1[2:4]}, {vlr} offset0:20 offset1:28")
    a("s_waitcnt lgkmcnt(2)")
    a(f"buffer_store_dwordx4 {g0}, {vzo}, {rZT}, {szoff} offen")
    a("s_waitcnt lgkmcnt(0)")
    a(f"buffer_store_dwordx4 {g1}, {vzo}, {rZT}, {szoff2} offen")
    a.label("A_done")
    a("s_endpgm")
    lines = a.finish(True)
    return kernel_text(name, lines, V.hi, 0, S.hi + 6), dict(grid=256, block=256, lds=8192)
```

```python
from kgen import *

def gen_B(name="kb_kernel"):
    a = Asm()
    V = Regs('v', 1, 256); S = Regs('s', 3, 100)
    tid = R('v', 0, 1); wg = R('s', 2, 1)
    sWS = S.alloc(2)
    rZT = S.alloc(4, 4); rWT = S.alloc(4, 4); rZI = S.alloc(4, 4)
    sw = S.alloc(1); st = S.alloc(1); st2 = S.alloc(1); sU = S.alloc(1); sV = S.alloc(1); sWo = S.alloc(1)
    sOut = S.alloc(1); sSign = S.alloc(1); sSkip = S.alloc(1)
    a(f"s_cmp_ge_u32 {wg}, 257")
    a("s_cbranch_scc1 B_done")
    a(f"s_load_dwordx2 {sWS}, s[0:1], {KA_WS}")
    n = V.alloc(1); q = V.alloc(1); fn = V.alloc(1); fq = V.alloc(1); lane = V.alloc(1); n7 = V.alloc(1)
    fp1 = V.alloc(1); vt = V.alloc(1); vt2 = V.alloc(1)
    a(f"v_lshrrev_b32 {q}, 6, {tid}")
    a(f"v_readfirstlane_b32 {sw}, {q}")
    a(f"v_and_b32 {lane}, 63, {tid}")
    a(f"v_and_b32 {n}, 15, {tid}")
    a(f"v_lshrrev_b32 {q}, 4, {lane}")
    a(f"v_and_b32 {n7}, 7, {tid}")
    a(f"s_lshl_b32 {sU}, {wg}, 12")
    a(f"s_sub_u32 {st}, 512, {wg}")
    a(f"s_and_b32 {st}, {st}, 511")
    a(f"s_lshl_b32 {sV}, {st}, 12")
    a(f"s_lshl_b32 {sWo}, {wg}, 13")
    a(f"s_lshl_b32 {st}, {sw}, 11")
    a(f"s_add_u32 {sWo}, {sWo}, {st}")
    vz = V.alloc(1); vw = V.alloc(1)
    a(f"v_lshlrev_b32 {vz}, 4, {lane}")
    a(f"v_lshlrev_b32 {vw}, 7, {q}")
    a(f"v_lshl_add_u32 {vw}, {n7}, 4, {vw}")
    a("s_waitcnt lgkmcnt(0)")
    srd(a, rZT, sWS, WS_ZT, SZ_ZT)
    srd(a, rWT, sWS, WS_WT, SZ_WT)
    zU = {(t, u): V.alloc(4, 4) for t in range(2) for u in range(2)}
    zV = {(t, u): V.alloc(4, 4) for t in range(2) for u in range(2)}
    for t in range(2):
        for u in range(2):
            a(f"buffer_load_dwordx4 {zU[(t,u)]}, {vz}, {rZT}, {sU} offen offset:{(t*2+u)*1024}")
            a(f"buffer_load_dwordx4 {zV[(t,u)]}, {vz}, {rZT}, {sV} offen offset:{(t*2+u)*1024}")
    wl = {(w, e): V.alloc(4, 4) for w in range(2) for e in range(2)}
    for w in range(2):
        for e in range(2):
            a(f"buffer_load_dwordx4 {wl[(w,e)]}, {vw}, {rWT}, {sWo} offen offset:{w*1024 + e*512}")
    srd(a, rZI, sWS, WS_ZI, SZ_ZI)
    a(f"s_lshr_b32 {st}, {sw}, 1")
    a(f"s_cmp_eq_u32 {st}, 0")
    a(f"s_cselect_b32 {sOut}, {sU}, {sV}")
    a(f"s_cselect_b32 {sSign}, 0, 0x80000000")
    a(f"s_and_b32 {st2}, {sw}, 1")
    a(f"s_lshl_b32 {st2}, {st2}, 11")
    a(f"s_add_u32 {sOut}, {sOut}, {st2}")
    a(f"s_and_b32 {st2}, {wg}, 255")
    a(f"s_cmp_eq_u32 {st2}, 0")
    a(f"s_cselect_b32 {sSkip}, {st}, 0")
    a(f"v_cvt_f32_u32 {fn}, {n}")
    a(f"v_cvt_f32_u32 {fq}, {q}")
    a(f"s_lshl_b32 {st}, {sw}, 3")
    a(f"v_add_u32 {vt}, {st}, {n7}")
    a(f"v_cvt_f32_u32 {fp1}, {vt}")
    mU = V.alloc(1); mV = V.alloc(1); sg = V.alloc(1); flip = V.alloc(1)
    a(f"v_cmp_gt_u32 vcc, 8, {n}")
    a(f"v_cndmask_b32 {mU}, 0, -1, vcc")
    a(f"v_not_b32 {mV}, {mU}")
    a(f"v_mov_b32 {vt2}, 1.0")
    a(f"v_cndmask_b32 {sg}, -1.0, {vt2}, vcc")
    a(f"v_and_b32 {vt}, 1, {vt}")
    a(f"v_mul_u32_u24 {flip}, 0x8000, {vt}")
    a(f"v_lshl_or_b32 {flip}, {flip}, 16, {flip}")
    ang = V.alloc(1); dl = V.alloc(1); base = V.alloc(1); c = V.alloc(1); s = V.alloc(1); c2 = V.alloc(1); s2 = V.alloc(1)
    BU = {(t, cc): V.alloc(4, 4) for t in range(2) for cc in range(2)}
    BV = {(t, cc): V.alloc(4, 4) for t in range(2) for cc in range(2)}
    a(f"v_mul_f32 {dl}, {fl(1/32)}, {fp1}")
    a(f"v_mul_f32 {ang}, 4.0, {fq}")
    a(f"v_mul_f32 {ang}, {ang}, {dl}")
    for jj in range(4):
        cos_sin(a, c, s, ang)
        if jj < 3: a(f"v_add_f32 {ang}, {ang}, {dl}")
        a(f"v_mul_f32 {s2}, {sg}, {s}")
        a(f"v_mul_f32 {c2}, {sg}, {c}")
        a(f"v_cvt_pk_bf16_f32 {vt}, {c}, {s2}")
        a(f"v_cvt_pk_bf16_f32 {vt2}, -{s}, {c2}")
        a(f"v_and_b32 {BU[(0,0)][jj]}, {mU}, {vt}")
        a(f"v_and_b32 {BV[(0,0)][jj]}, {mV}, {vt}")
        a(f"v_and_b32 {BU[(0,1)][jj]}, {mU}, {vt2}")
        a(f"v_and_b32 {BV[(0,1)][jj]}, {mV}, {vt2}")
    for cc in range(2):
        for jj in range(4):
            a(f"v_xor_b32 {BU[(1,cc)][jj]}, {flip}, {BU[(0,cc)][jj]}")
            a(f"v_xor_b32 {BV[(1,cc)][jj]}, {flip}, {BV[(0,cc)][jj]}")
    A2 = {(w, u, cc): V.alloc(4, 4) for w in range(2) for u in range(2) for cc in range(2)}
    flipn = V.alloc(1)
    a(f"v_and_b32 {vt}, 1, {n}")
    a(f"v_mul_u32_u24 {flipn}, 0x8000, {vt}")
    a(f"v_lshl_or_b32 {flipn}, {flipn}, 16, {flipn}")
    a(f"v_mul_f32 {dl}, {fl(1/32)}, {fn}")
    a(f"v_mul_f32 {ang}, 4.0, {fq}")
    a(f"v_mul_f32 {ang}, {ang}, {dl}")
    for jj in range(4):
        cos_sin(a, c, s, ang)
        if jj < 3: a(f"v_add_f32 {ang}, {ang}, {dl}")
        a(f"v_cvt_pk_bf16_f32 {A2[(0,0,0)][jj]}, {c}, {s}")
        a(f"v_cvt_pk_bf16_f32 {A2[(0,0,1)][jj]}, -{s}, {c}")
    for cc in range(2):
        for jj in range(4):
            a(f"v_xor_b32 {A2[(0,1,cc)][jj]}, {flipn}, {A2[(0,0,cc)][jj]}")
    for u in range(2):
        for cc in range(2):
            for jj in range(4):
                if jj % 2 == 0: a(f"v_mov_b32 {A2[(1,u,cc)][jj]}, {A2[(0,u,cc)][jj]}")
                else: a(f"v_xor_b32 {A2[(1,u,cc)][jj]}, 0x80008000, {A2[(0,u,cc)][jj]}")
    tfc = [V.alloc(4), V.alloc(4)]; tfs = [V.alloc(4), V.alloc(4)]
    a(f"v_mul_f32 {dl}, {fl(1/1024)}, {fp1}")
    a(f"v_mul_f32 {base}, 4.0, {fq}")
    a(f"v_mul_f32 {base}, {base}, {dl}")
    def angles(cdst, sdst, ks):
        for (i, r, k) in ks:
            if k == 0: cos_sin(a, cdst[i][r], sdst[i][r], base)
            else:
                a(f"v_mov_b32 {ang}, {fl(float(k))}")
                a(f"v_fma_f32 {ang}, {ang}, {dl}, {base}")
                cos_sin(a, cdst[i][r], sdst[i][r], ang)
    angles(tfc, tfs, [(u, r, 16 * u + r) for u in range(2) for r in range(4)])
    thc = [V.alloc(4), V.alloc(4)]; ths = [V.alloc(4), V.alloc(4)]
    a(f"v_mul_f32 {base}, {fl(128.0)}, {fq}")
    a(f"v_add_f32 {base}, {base}, {fp1}")
    a(f"v_mul_f32 {base}, {fl(1/2048)}, {base}")
    a(f"v_mov_b32 {dl}, {fl(32/2048)}")
    angles(thc, ths, [(w, r, 16 * w + r) for w in range(2) for r in range(4)])
    for w in range(2):
        for r in range(4):
            a(f"v_mul_f32_e64 {ths[w][r]}, {ths[w][r]}, -{sg}")
            a(f"v_mul_f32 {thc[w][r]}, {thc[w][r]}, {sg}")
    tic = [V.alloc(4), V.alloc(4)]; tis = [V.alloc(4), V.alloc(4)]
    fpi = V.alloc(1)
    a(f"v_and_b32 {vt}, 1, {q}")
    a(f"v_lshlrev_b32 {vt}, 2, {vt}")
    a(f"s_lshl_b32 {st}, {sw}, 3")
    a(f"v_add_u32 {vt}, {st}, {vt}")
    a(f"v_cvt_f32_u32 {fpi}, {vt}")
    for tl in range(2):
        a(f"v_add_f32 {dl}, {fl(16.0*tl)}, {fn}") if tl else a(f"v_mov_b32 {dl}, {fn}")
        a(f"v_mul_f32 {dl}, {fl(1/1024)}, {dl}")
        a(f"v_mul_f32 {base}, {fpi}, {dl}")
        for r in range(4):
            if r == 0: cos_sin(a, tic[tl][r], tis[tl][r], base)
            else:
                a(f"v_add_f32 {base}, {base}, {dl}")
                cos_sin(a, tic[tl][r], tis[tl][r], base)
    snrm = S.alloc(2)
    a(f"s_mov_b32 {snrm[0]}, {fl(2.0**-20)}")
    a(f"s_mov_b32 {snrm[1]}, {fl(2.0**-20)}")
    for tl in range(2):
        for h in range(2):
            a(f"v_pk_mul_f32 {tic[tl][2*h:2*h+2]}, {tic[tl][2*h:2*h+2]}, {snrm}")
            a(f"v_pk_mul_f32 {tis[tl][2*h:2*h+2]}, {tis[tl][2*h:2*h+2]}, {snrm}")
    vlw = V.alloc(1); vlr = V.alloc(1)
    a(f"v_lshrrev_b32 {vt}, 1, {q}")
    a(f"v_lshlrev_b32 {vlw}, 12, {vt}")
    a(f"v_and_b32 {vt}, 1, {q}")
    a(f"v_lshlrev_b32 {vt}, 8, {vt}")
    a(f"v_add_u32 {vlw}, {vlw}, {vt}")
    a(f"v_lshl_add_u32 {vlw}, {n}, 4, {vlw}")
    a(f"s_lshr_b32 {st}, {sw}, 1")
    a(f"s_lshl_b32 {st}, {st}, 10")
    a(f"s_and_b32 {st2}, {sw}, 1")
    a(f"s_lshl_b32 {st2}, {st2}, 9")
    a(f"s_add_u32 {st}, {st}, {st2}")
    a(f"v_add_u32 {vlw}, {st}, {vlw}")
    a(f"s_lshl_b32 {st}, {sw}, 11")
    a(f"v_add_u32 {vlr}, {st}, {vz}")
    D = {(u, cc): V.alloc(4, 4) for u in range(2) for cc in range(2)}
    a("s_waitcnt vmcnt(4)")
    for t in range(2):
        for u in range(2):
            for cc in range(2):
                mfma(a, D[(u, cc)], zU[(t, u)], BU[(t, cc)], 0 if t == 0 else D[(u, cc)])
        for u in range(2):
            for cc in range(2):
                mfma(a, D[(u, cc)], zV[(t, u)], BV[(t, cc)], D[(u, cc)])
    a("s_waitcnt vmcnt(0)")
    G = {}
    w0r = V.alloc(4); w0i = V.alloc(4)
    for w in range(2):
        w1r = V.alloc(4); w1i = V.alloc(4)
        for r in range(4):
            a(f"v_lshlrev_b32 {w0r[r]}, 16, {wl[(w,0)][r]}")
            a(f"v_and_b32 {w0i[r]}, 0xffff0000, {wl[(w,0)][r]}")
            a(f"v_lshlrev_b32 {w1r[r]}, 16, {wl[(w,1)][r]}")
            a(f"v_and_b32 {w1i[r]}, 0xffff0000, {wl[(w,1)][r]}")
        sre = wl[(w, 0)]; sim = wl[(w, 1)]
        for h in range(2):
            sl = slice(2*h, 2*h+2)
            a(f"v_pk_add_f32 {sre[sl]}, {w0r[sl]}, {w1r[sl]}")
            a(f"v_pk_add_f32 {sim[sl]}, {w0i[sl]}, {w1i[sl]}")
            a(f"v_pk_add_f32 {w0r[sl]}, {w0r[sl]}, {w1r[sl]} neg_lo:[0,1] neg_hi:[0,1]")
            a(f"v_pk_add_f32 {w0i[sl]}, {w0i[sl]}, {w1i[sl]} neg_lo:[0,1] neg_hi:[0,1]")
        for h in range(2):
            sl = slice(2*h, 2*h+2)
            a(f"v_pk_fma_f32 {sre[sl]}, {w0r[sl]}, {ths[w][sl]}, {sre[sl]}")
            a(f"v_pk_fma_f32 {sim[sl]}, {w0i[sl]}, {ths[w][sl]}, {sim[sl]}")
            a(f"v_pk_mul_f32 {w1r[sl]}, {w0r[sl]}, {thc[w][sl]}")
            a(f"v_pk_mul_f32 {w1i[sl]}, {w0i[sl]}, {thc[w][sl]}")
        G[(w, 'gr')] = sre; G[(w, 'gi')] = sim; G[(w, 'er')] = w1r; G[(w, 'ei')] = w1i
        G[(w, 't0')] = w0r; G[(w, 't1')] = w0i
    T = {(u, cc): zV[(u, cc)] for u in range(2) for cc in range(2)}
    zf = [V.alloc(4, 4), V.alloc(4, 4)]
    def twiddle(Dm, twc, tws):
        for u in range(2):
            for h in range(2):
                sl = slice(2*h, 2*h+2)
                cmul_pk(a, T[(u,0)][sl], T[(u,1)][sl], Dm[(u,0)][sl], Dm[(u,1)][sl], twc[u][sl], tws[u][sl])
        for u in range(2):
            for r in range(4):
                a(f"v_cvt_pk_bf16_f32 {zf[u][r]}, {T[(u,0)][r]}, {T[(u,1)][r]}")
    twiddle(D, tfc, tfs)
    for u in range(2):
        for w in range(2):
            for cc in range(2):
                mfma(a, D[(w, cc)], A2[(w, u, cc)], zf[u], 0 if u == 0 else D[(w, cc)])
    X = T
    for w in range(2):
        for cc in range(2):
            for r in range(4):
                a(f"v_mov_b32_dpp {X[(w,cc)][r]}, {D[(w,cc)][r]} row_ror:8 row_mask:0xf bank_mask:0xf")
    O = {(w, cc): zU[(w, cc)] for w in range(2) for cc in range(2)}
    for w in range(2):
        gr, gi, er, ei = G[(w,'gr')], G[(w,'gi')], G[(w,'er')], G[(w,'ei')]
        for h in range(2):
            sl = slice(2*h, 2*h+2)
            ore, oim = O[(w,0)][sl], O[(w,1)][sl]
            Or, Oi, Xr, Xi = D[(w,0)][sl], D[(w,1)][sl], X[(w,0)][sl], X[(w,1)][sl]
            a(f"v_pk_mul_f32 {ore}, {gr[sl]}, {Or}")
            a(f"v_pk_mul_f32 {oim}, {gr[sl]}, {Oi}")
            a(f"v_pk_fma_f32 {ore}, {gi[sl]}, {Oi}, {ore} neg_lo:[1,0,0] neg_hi:[1,0,0]")
            a(f"v_pk_fma_f32 {oim}, {gi[sl]}, {Or}, {oim}")
            a(f"v_pk_fma_f32 {ore}, {er[sl]}, {Xi}, {ore} neg_lo:[1,0,0] neg_hi:[1,0,0]")
            a(f"v_pk_fma_f32 {oim}, {er[sl]}, {Xr}, {oim}")
            a(f"v_pk_fma_f32 {ore}, {ei[sl]}, {Xr}, {ore} neg_lo:[1,0,0] neg_hi:[1,0,0]")
            a(f"v_pk_fma_f32 {oim}, {ei[sl]}, {Xi}, {oim} neg_lo:[1,0,0] neg_hi:[1,0,0]")
    for w in range(2):
        for r in range(4):
            a(f"v_cvt_pk_bf16_f32 {zf[w][r]}, {O[(w,0)][r]}, -{O[(w,1)][r]}")
    for w in range(2):
        for tl in range(2):
            for cc in range(2):
                mfma(a, D[(tl, cc)], zf[w], A2[(tl, w, cc)], 0 if w == 0 else D[(tl, cc)])
    twiddle(D, tic, tis)
    for tl in range(2):
        a(f"ds_write_b128 {vlw}, {zf[tl]} offset:{tl * 2048}")
    a("s_waitcnt lgkmcnt(0)")
    a("s_barrier")
    for t in range(2):
        a(f"ds_read_b128 {zf[t]}, {vlr} offset:{t * 1024}")
    a("s_waitcnt lgkmcnt(1)")
    for th in range(2):
        for cc in range(2):
            mfma(a, D[(th, cc)], zf[0], A2[(th, 0, cc)], 0)
    a("s_waitcnt lgkmcnt(0)")
    for th in range(2):
        for cc in range(2):
            mfma(a, D[(th, cc)], zf[1], A2[(th, 1, cc)], D[(th, cc)])
    a(f"s_cmp_lg_u32 {sSkip}, 0")
    a("s_cbranch_scc1 B_done")
    for th in range(2):
        for r in range(4):
            a(f"v_cvt_pk_bf16_f32 {T[(th,0)][r]}, {D[(th,0)][r]}, {D[(th,1)][r]}")
        for r in range(4):
            a(f"v_xor_b32 {T[(th,0)][r]}, {sSign}, {T[(th,0)][r]}")
        a(f"buffer_store_dwordx4 {T[(th,0)]}, {vz}, {rZI}, {sOut} offen offset:{th * 1024}")
    a.label("B_done")
    a("s_endpgm")
    lines = a.finish(True)
    return kernel_text(name, lines, V.hi, 0, S.hi + 6), dict(grid=257, block=256, lds=8192)
```

```python
from kgen import *

def gen_A2(a, V, fn, fq, n, ang, dl, c, s, vt):
    A2 = {(w, u, cc): V.alloc(4, 4) for w in range(2) for u in range(2) for cc in range(2)}
    flipn = vt
    a(f"v_and_b32 {flipn}, 1, {n}")
    a(f"v_mul_u32_u24 {flipn}, 0x8000, {flipn}")
    a(f"v_lshl_or_b32 {flipn}, {flipn}, 16, {flipn}")
    a(f"v_mul_f32 {dl}, {fl(1/32)}, {fn}")
    a(f"v_mul_f32 {ang}, 4.0, {fq}")
    a(f"v_mul_f32 {ang}, {ang}, {dl}")
    for jj in range(4):
        cos_sin(a, c, s, ang)
        if jj < 3: a(f"v_add_f32 {ang}, {ang}, {dl}")
        a(f"v_cvt_pk_bf16_f32 {A2[(0,0,0)][jj]}, {c}, {s}")
        a(f"v_cvt_pk_bf16_f32 {A2[(0,0,1)][jj]}, -{s}, {c}")
    for cc in range(2):
        for jj in range(4):
            a(f"v_xor_b32 {A2[(0,1,cc)][jj]}, {flipn}, {A2[(0,0,cc)][jj]}")
    for u in range(2):
        for cc in range(2):
            for jj in range(4):
                if jj % 2 == 0: a(f"v_mov_b32 {A2[(1,u,cc)][jj]}, {A2[(0,u,cc)][jj]}")
                else: a(f"v_xor_b32 {A2[(1,u,cc)][jj]}, 0x80008000, {A2[(0,u,cc)][jj]}")
    return A2

def gen_C(name="kc_kernel"):
    a = Asm()
    V = Regs('v', 1, 256); S = Regs('s', 3, 100)
    tid = R('v', 0, 1); wg = R('s', 2, 1)
    sX = S.alloc(2); sWS = S.alloc(2)
    rX = S.alloc(4, 4); rZI = S.alloc(4, 4); rH1 = S.alloc(4, 4); rLN = S.alloc(4, 4)
    sw = S.alloc(1); st = S.alloc(1); st2 = S.alloc(1); sZ = S.alloc(1); sZ2 = S.alloc(1); sRow = S.alloc(1)
    smean = S.alloc(2); srstd = S.alloc(2)
    a(f"s_cmp_ge_u32 {wg}, 256")
    a("s_cbranch_scc1 C_done")
    a(f"s_load_dwordx2 {sX}, s[0:1], {KA_X}")
    a(f"s_load_dwordx2 {sWS}, s[0:1], {KA_WS}")
    n = V.alloc(1); q = V.alloc(1); fn = V.alloc(1); fq = V.alloc(1); lane = V.alloc(1); vt = V.alloc(1); vt2 = V.alloc(1)
    a(f"v_lshrrev_b32 {q}, 6, {tid}")
    a(f"v_readfirstlane_b32 {sw}, {q}")
    a(f"v_and_b32 {lane}, 63, {tid}")
    a(f"v_and_b32 {n}, 15, {tid}")
    a(f"v_lshrrev_b32 {q}, 4, {lane}")
    a(f"s_bfe_u32 {st}, {wg}, 0x10002")
    a(f"s_lshl_b32 {sZ}, {st}, 7")
    a(f"s_lshr_b32 {st}, {wg}, 7")
    a(f"s_lshl_b32 {st}, {st}, 6")
    a(f"s_add_u32 {sZ}, {sZ}, {st}")
    a(f"s_and_b32 {st}, {wg}, 3")
    a(f"s_lshl_b32 {st}, {st}, 4")
    a(f"s_add_u32 {sZ}, {sZ}, {st}")
    a(f"s_bfe_u32 {st}, {wg}, 0x40003")
    a(f"s_add_u32 {sZ}, {sZ}, {st}")
    a(f"s_lshl_b32 {sZ}, {sZ}, 4")
    a(f"s_add_u32 {sZ2}, {sZ}, {256 * 4096}")
    a(f"s_lshl_b32 {sRow}, {wg}, 13")
    a(f"s_lshl_b32 {st}, {sw}, 11")
    a(f"s_add_u32 {sRow}, {sRow}, {st}")
    vz = V.alloc(1); vx = V.alloc(1); vl = V.alloc(1)
    a(f"v_lshlrev_b32 {vz}, 12, {tid}")
    a(f"v_lshlrev_b32 {vx}, 5, {n}")
    a(f"v_lshl_add_u32 {vx}, {q}, 3, {vx}")
    a(f"v_lshlrev_b32 {vl}, 6, {n}")
    a(f"v_lshl_add_u32 {vl}, {q}, 4, {vl}")
    a("s_waitcnt lgkmcnt(0)")
    srd(a, rZI, sWS, WS_ZI, SZ_ZI)
    g0 = V.alloc(4, 4); g1 = V.alloc(4, 4)
    a(f"buffer_load_dwordx4 {g0}, {vz}, {rZI}, {sZ} offen")
    a(f"buffer_load_dwordx4 {g1}, {vz}, {rZI}, {sZ2} offen")
    srd(a, rX, sX, 0, SZ_X)
    xa = [V.alloc(2), V.alloc(2)]; xb = [V.alloc(2), V.alloc(2)]
    for w in range(2):
        a(f"buffer_load_dwordx2 {xa[w]}, {vx}, {rX}, {sRow} offen offset:{512 * w}")
        a(f"buffer_load_dwordx2 {xb[w]}, {vx}, {rX}, {sRow} offen offset:{1024 + 512 * w}")
    srd(a, rH1, sWS, WS_H1, SZ_H1)
    srd(a, rLN, sWS, WS_LN2, SZ_LN2)
    a(f"v_cvt_f32_u32 {fn}, {n}")
    a(f"v_cvt_f32_u32 {fq}, {q}")
    ang = V.alloc(1); dl = V.alloc(1); c = V.alloc(1); s = V.alloc(1); base = V.alloc(1)
    F16r = V.alloc(4, 4); F16i = V.alloc(4, 4)
    a(f"v_mul_f32 {dl}, {fl(1/16)}, {fn}")
    a(f"v_mul_f32 {ang}, {fn}, {fq}")
    a(f"v_mul_f32 {ang}, {fl(0.25)}, {ang}")
    for jj in range(4):
        cos_sin(a, c, s, ang)
        if jj < 3: a(f"v_add_f32 {ang}, {ang}, {dl}")
        a(f"v_cvt_pk_bf16_f32 {F16r[jj]}, {c}, {s}")
        a(f"v_cvt_pk_bf16_f32 {F16i[jj]}, -{s}, {c}")
    twc = [V.alloc(4), V.alloc(4)]; tws = [V.alloc(4), V.alloc(4)]
    a(f"v_mul_f32 {dl}, {fl(1/512)}, {fn}")
    a(f"v_mul_f32 {base}, 4.0, {fq}")
    a(f"v_mul_f32 {base}, {base}, {dl}")
    for u in range(2):
        for r in range(4):
            k = 16 * u + r
            if k == 0: cos_sin(a, twc[u][r], tws[u][r], base)
            else:
                a(f"v_mov_b32 {ang}, {fl(float(k))}")
                a(f"v_fma_f32 {ang}, {ang}, {dl}, {base}")
                cos_sin(a, twc[u][r], tws[u][r], ang)
    A2 = gen_A2(a, V, fn, fq, n, ang, dl, c, s, vt)
    vlw = V.alloc(1); vlr = V.alloc(1)
    a(f"v_lshrrev_b32 {vt}, 7, {tid}")
    a(f"v_lshl_add_u32 {vlw}, {vt}, 4, {tid}")
    a(f"v_lshlrev_b32 {vlw}, 2, {vlw}")
    a(f"v_mul_u32_u24 {vlr}, 144, {q}")
    a(f"v_add_u32 {vlr}, {vlr}, {n}")
    a(f"s_mul_i32 {st}, {sw}, 576")
    a(f"v_add_u32 {vlr}, {st}, {vlr}")
    a(f"v_lshlrev_b32 {vlr}, 2, {vlr}")
    a("s_waitcnt vmcnt(5)")
    for r in range(4):
        a(f"ds_write_b32 {vlw}, {g0[r]} offset:{r * 2304}")
    a("s_waitcnt vmcnt(4)")
    for r in range(4):
        a(f"ds_write_b32 {vlw}, {g1[r]} offset:{r * 2304 + 1152}")
    a("s_waitcnt lgkmcnt(0)")
    a("s_barrier")
    z = [V.alloc(4, 4), V.alloc(4, 4)]
    for u in range(2):
        a(f"ds_read2_b32 {z[u][0:2]}, {vlr} offset0:{16*u} offset1:{32 + 16*u}")
        a(f"ds_read2_b32 {z[u][2:4]}, {vlr} offset0:{64 + 16*u} offset1:{96 + 16*u}")
    D = {(u, cc): V.alloc(4, 4) for u in range(2) for cc in range(2)}
    a("s_waitcnt lgkmcnt(2)")
    mfma(a, D[(0, 0)], z[0], F16r, 0)
    mfma(a, D[(0, 1)], z[0], F16i, 0)
    a("s_waitcnt lgkmcnt(0)")
    mfma(a, D[(1, 0)], z[1], F16r, 0)
    mfma(a, D[(1, 1)], z[1], F16i, 0)
    a("s_waitcnt vmcnt(0)")
    e = V.alloc(16)
    for w in range(2):
        for h in range(2):
            j = 4 * w + 2 * h
            a(f"v_lshlrev_b32 {e[2*j]}, 16, {xa[w][h]}")
            a(f"v_lshlrev_b32 {e[2*j+1]}, 16, {xb[w][h]}")
            a(f"v_and_b32 {e[2*j+2]}, 0xffff0000, {xa[w][h]}")
            a(f"v_and_b32 {e[2*j+3]}, 0xffff0000, {xb[w][h]}")
    T = {(u, cc): V.alloc(4, 4) for u in range(2) for cc in range(2)}
    for u in range(2):
        for h in range(2):
            sl = slice(2*h, 2*h+2)
            cmul_pk(a, T[(u,0)][sl], T[(u,1)][sl], D[(u,0)][sl], D[(u,1)][sl], twc[u][sl], tws[u][sl])
    for u in range(2):
        for r in range(4):
            a(f"v_cvt_pk_bf16_f32 {z[u][r]}, {T[(u,0)][r]}, {T[(u,1)][r]}")
    for u in range(2):
        for w in range(2):
            for cc in range(2):
                mfma(a, D[(w, cc)], z[u], A2[(w, u, cc)], 0 if u == 0 else D[(w, cc)])
    for w in range(2):
        for r in range(4):
            j = 4 * w + r
            a(f"v_add_f32 {e[2*j]}, {e[2*j]}, {D[(w,0)][r]}")
            a(f"v_sub_f32 {e[2*j+1]}, {e[2*j+1]}, {D[(w,1)][r]}")
    ha = [V.alloc(2), V.alloc(2)]; hb = [V.alloc(2), V.alloc(2)]
    for w in range(2):
        for h in range(2):
            j = 4 * w + 2 * h
            a(f"v_cvt_pk_bf16_f32 {ha[w][h]}, {e[2*j]}, {e[2*j+2]}")
            a(f"v_cvt_pk_bf16_f32 {hb[w][h]}, {e[2*j+1]}, {e[2*j+3]}")
    for w in range(2):
        a(f"buffer_store_dwordx2 {ha[w]}, {vx}, {rH1}, {sRow} offen offset:{512 * w}")
        a(f"buffer_store_dwordx2 {hb[w]}, {vx}, {rH1}, {sRow} offen offset:{1024 + 512 * w}")
    sm = V.alloc(2); t2 = V.alloc(2)
    a(f"v_pk_add_f32 {sm}, {e[0:2]}, {e[2:4]}")
    a(f"v_pk_add_f32 {t2}, {e[4:6]}, {e[6:8]}")
    for j in range(4, 8, 2):
        a(f"v_pk_add_f32 {sm}, {sm}, {e[2*j:2*j+2]}")
        a(f"v_pk_add_f32 {t2}, {t2}, {e[2*j+2:2*j+4]}")
    a(f"v_pk_add_f32 {sm}, {sm}, {t2}")
    wave_reduce_sum(a, [sm[0], sm[1]])
    a(f"v_mul_f32 {sm[0]}, {fl(1/512)}, {sm[0]}")
    a(f"v_mul_f32 {sm[1]}, {fl(1/512)}, {sm[1]}")
    a(f"v_readlane_b32 {smean[0]}, {sm[0]}, 63")
    a(f"v_readlane_b32 {smean[1]}, {sm[1]}, 63")
    for j in range(8):
        a(f"v_pk_add_f32 {e[2*j:2*j+2]}, {e[2*j:2*j+2]}, {smean} neg_lo:[0,1] neg_hi:[0,1]")
    a(f"v_pk_mul_f32 {sm}, {e[0:2]}, {e[0:2]}")
    a(f"v_pk_mul_f32 {t2}, {e[2:4]}, {e[2:4]}")
    for j in range(2, 8, 2):
        a(f"v_pk_fma_f32 {sm}, {e[2*j:2*j+2]}, {e[2*j:2*j+2]}, {sm}")
        a(f"v_pk_fma_f32 {t2}, {e[2*j+2:2*j+4]}, {e[2*j+2:2*j+4]}, {t2}")
    a(f"v_pk_add_f32 {sm}, {sm}, {t2}")
    wave_reduce_sum(a, [sm[0], sm[1]])
    a(f"v_mov_b32 {vt}, {fl(1e-5)}")
    a(f"v_mov_b32 {vt2}, {fl(1/512)}")
    a(f"v_fma_f32 {sm[0]}, {sm[0]}, {vt2}, {vt}")
    a(f"v_fma_f32 {sm[1]}, {sm[1]}, {vt2}, {vt}")
    a(f"v_rsq_f32 {sm[0]}, {sm[0]}")
    a(f"v_rsq_f32 {sm[1]}, {sm[1]}")
    a(f"v_readlane_b32 {srstd[0]}, {sm[0]}, 63")
    a(f"v_readlane_b32 {srstd[1]}, {sm[1]}, 63")
    for j in range(8):
        a(f"v_pk_mul_f32 {e[2*j:2*j+2]}, {e[2*j:2*j+2]}, {srstd}")
    la = V.alloc(4, 4); lb = V.alloc(4, 4)
    for w in range(2):
        for h in range(2):
            j = 4 * w + 2 * h
            a(f"v_cvt_pk_bf16_f32 {la[2*w+h]}, {e[2*j]}, {e[2*j+2]}")
            a(f"v_cvt_pk_bf16_f32 {lb[2*w+h]}, {e[2*j+1]}, {e[2*j+3]}")
    a(f"buffer_store_dwordx4 {la}, {vl}, {rLN}, {sRow} offen")
    a(f"buffer_store_dwordx4 {lb}, {vl}, {rLN}, {sRow} offen offset:1024")
    a.label("C_done")
    a("s_endpgm")
    lines = a.finish(True)
    return kernel_text(name, lines, V.hi, 0, S.hi + 6), dict(grid=256, block=256, lds=4 * 2304)
```

```python
from kgen import *

NSLOT = 5
STAGE_BYTES = 28672

def gen_G1(name="kg1_kernel"):
    a = Asm()
    V = Regs('v', 1, 256); S = Regs('s', 3, 100); A = Regs('a', 0, 256)
    tid = R('v', 0, 1); wg = R('s', 2, 1)
    sWG = S.alloc(2); sWU = S.alloc(2); sWS = S.alloc(2)
    rW = S.alloc(4, 4); rLN = S.alloc(4, 4); rHF = S.alloc(4, 4)
    sw = S.alloc(1); st = S.alloc(1); st2 = S.alloc(1); smb = S.alloc(1); sfb = S.alloc(1)
    sA0 = S.alloc(1); sA1 = S.alloc(1); sWo = S.alloc(1); sM0 = S.alloc(1); sStage = S.alloc(1)
    a(f"s_cmp_ge_u32 {wg}, 256")
    a("s_cbranch_scc1 G1_done")
    a(f"s_load_dwordx4 s[{sWG.base}:{sWG.base+3}], s[0:1], {KA_WG}") if sWG.base % 4 == 0 else (
        a(f"s_load_dwordx2 {sWG}, s[0:1], {KA_WG}"), a(f"s_load_dwordx2 {sWU}, s[0:1], {KA_WU}"))
    a(f"s_load_dwordx2 {sWS}, s[0:1], {KA_WS}")
    n = V.alloc(1); q = V.alloc(1); lane = V.alloc(1); vt = V.alloc(1); vt2 = V.alloc(1)
    a(f"v_lshrrev_b32 {q}, 6, {tid}")
    a(f"v_readfirstlane_b32 {sw}, {q}")
    a(f"v_and_b32 {lane}, 63, {tid}")
    a(f"v_and_b32 {n}, 15, {tid}")
    a(f"v_lshrrev_b32 {q}, 4, {lane}")
    a(f"s_and_b32 {st}, {wg}, 1")
    a(f"s_lshl_b32 {smb}, {st}, 3")
    a(f"s_bfe_u32 {st}, {wg}, 0x30003")
    a(f"s_add_u32 {smb}, {smb}, {st}")
    a(f"s_bfe_u32 {st}, {wg}, 0x20001")
    a(f"s_lshl_b32 {sfb}, {st}, 2")
    a(f"s_lshr_b32 {st}, {wg}, 6")
    a(f"s_add_u32 {sfb}, {sfb}, {st}")
    a(f"s_lshl_b32 {sA0}, {smb}, 17")
    a(f"s_lshl_b32 {st}, {sw}, 15")
    a(f"s_add_u32 {sA0}, {sA0}, {st}")
    a(f"s_add_u32 {sA1}, {sA0}, 16384")
    vact = V.alloc(1)
    a(f"v_lshlrev_b32 {vact}, 10, {n}")
    a(f"v_lshl_add_u32 {vact}, {q}, 4, {vact}")
    vdma = V.alloc(7)
    a(f"s_and_b32 {st}, {sw}, 1")
    a(f"s_mul_i32 {st}, {st}, 448")
    for jj in range(7):
        a(f"v_add_u32 {vt}, {st}, {lane}")
        if jj: a(f"v_add_u32 {vt}, {64 * jj}, {vt}")
        a(f"v_mul_u32_u24 {vt2}, 74899, {vt}")
        a(f"v_lshrrev_b32 {vt2}, 20, {vt2}")
        a(f"v_mul_u32_u24 {vdma[jj]}, 14, {vt2}")
        a(f"v_sub_u32 {vt}, {vt}, {vdma[jj]}")
        a(f"v_lshlrev_b32 {vt}, 4, {vt}")
        a(f"v_lshrrev_b32 {vdma[jj]}, 5, {vt2}")
        a(f"v_lshlrev_b32 {vdma[jj]}, 8, {vdma[jj]}")
        a(f"v_and_b32 {vt2}, 31, {vt2}")
        a(f"v_add_u32 {vt2}, {vt2}, {vdma[jj]}")
        a(f"v_mul_u32_u24 {vdma[jj]}, 3584, {vt2}")
        a(f"v_add_u32 {vdma[jj]}, {vdma[jj]}, {vt}")
    a(f"s_mul_i32 {sWo}, {sfb}, 224")
    a(f"s_lshr_b32 {st}, {sw}, 1")
    a(f"s_mul_i32 {sM0}, {st}, 14336")
    a(f"s_and_b32 {st2}, {sw}, 1")
    a(f"s_mul_i32 {st2}, {st2}, 7168")
    a(f"s_add_u32 {sM0}, {sM0}, {st2}")
    vrd = V.alloc(1); vrs = V.alloc(1)
    a(f"v_bfe_u32 {vt}, {lane}, 2, 2")
    a(f"v_lshl_add_u32 {vt}, {q}, 2, {vt}")
    a(f"v_mul_u32_u24 {vrd}, 224, {vt}")
    a(f"v_and_b32 {vt}, 3, {lane}")
    a(f"v_lshl_add_u32 {vrd}, {vt}, 3, {vrd}")
    a("s_waitcnt lgkmcnt(0)")
    srd(a, rLN, sWS, WS_LN2, SZ_LN2)
    a(f"s_cmp_lt_u32 {sw}, 2")
    a(f"s_cselect_b32 {rW[0]}, {sWG[0]}, {sWU[0]}")
    a(f"s_cselect_b32 {rW[1]}, {sWG[1]}, {sWU[1]}")
    a(f"s_and_b32 {rW[1]}, {rW[1]}, 0xffff")
    a(f"s_mov_b32 {rW[2]}, {hex(SZ_WG)}")
    a(f"s_mov_b32 {rW[3]}, 0x20000")
    act = {(nt, s): A.alloc(4, 4) for nt in range(2) for s in range(16)}
    def load_act(s):
        a(f"buffer_load_dwordx4 {act[(0,s)]}, {vact}, {rLN}, {sA0} offen offset:{64 * s}")
        a(f"buffer_load_dwordx4 {act[(1,s)]}, {vact}, {rLN}, {sA1} offen offset:{64 * s}")
    def dma(stg):
        slot = stg % NSLOT
        a(f"s_add_u32 {sStage}, {sWo}, {stg * 32 * 3584}")
        for jj in range(7):
            a(f"s_add_u32 m0, {sM0}, {slot * STAGE_BYTES + jj * 1024}")
            a(f"buffer_load_dwordx4 {vdma[jj]}, {rW}, {sStage} offen lds")
    for stg in range(4):
        load_act(2 * stg); load_act(2 * stg + 1)
        dma(stg)
    for s in range(8, 16): load_act(s)
    srd(a, rHF, sWS, WS_HF, SZ_HF)
    acc = {(T, mat, nt): V.alloc(4, 4) for T in range(7) for mat in range(2) for nt in range(2)}
    fr = [{(T, mat): A.alloc(4, 4) for T in range(7) for mat in range(2)} for _ in range(2)]
    def reads(s):
        sl = s & 1
        out = []
        for T in range(7):
            for mat in range(2):
                for w in range(2):
                    off = mat * 14336 + w * 7168 + sl * 3584 + 32 * T
                    out.append(f"ds_read_b64_tr_b16 {fr[s & 1][(T, mat)][2*w:2*w+2]}, {vrs} offset:{off}")
        return out
    need = {0: 49, 1: 45, 2: 41, 3: 37, 4: 21, 5: 14, 6: 7, 7: 0}
    def stage_open(stg):
        a(f"s_waitcnt vmcnt({need[stg]})")
        a("s_barrier")
        a(f"v_add_u32 {vrs}, {(stg % NSLOT) * STAGE_BYTES}, {vrd}")
        if stg + 4 < 8: dma(stg + 4)
    stage_open(0)
    for r_ in reads(0): a(r_)
    for s in range(16):
        a("s_waitcnt lgkmcnt(0)")
        nxt = []
        if s + 1 < 16:
            if (s + 1) % 2 == 0: stage_open((s + 1) // 2)
            nxt = reads(s + 1)
        ri = 0
        k = 0
        for T in range(7):
            for mat in range(2):
                for nt in range(2):
                    c = 0 if s == 0 else acc[(T, mat, nt)]
                    mfma(a, acc[(T, mat, nt)], fr[s & 1][(T, mat)], act[(nt, s)], c)
                    if ri < len(nxt):
                        a(nxt[ri]); ri += 1
    vh = V.alloc(1); so = S.alloc(1)
    a(f"v_lshlrev_b32 {vh}, 4, {lane}")
    sMt = S.alloc(2)
    a(f"s_lshl_b32 {st}, {smb}, 3")
    a(f"s_lshl_b32 {st2}, {sw}, 1")
    a(f"s_add_u32 {st}, {st}, {st2}")
    a(f"s_mul_i32 {sMt[0]}, {st}, 57344")
    a(f"s_add_u32 {sMt[1]}, {sMt[0]}, 57344")
    a(f"s_mul_i32 {sfb}, {sfb}, 7")
    hb = [V.alloc(2), V.alloc(2), V.alloc(2), V.alloc(2)]
    hi = 0
    for T in range(7):
        a(f"s_add_u32 {st}, {sfb}, {T}")
        a(f"s_lshr_b32 {st2}, {st}, 1")
        a(f"s_lshl_b32 {st2}, {st2}, 10")
        a(f"s_and_b32 {st}, {st}, 1")
        a(f"s_lshl_b32 {st}, {st}, 3")
        a(f"s_add_u32 {st2}, {st2}, {st}")
        for nt in range(2):
            g = acc[(T, 0, nt)]; u = acc[(T, 1, nt)]
            for r in range(4):
                a(f"v_max_f32 {g[r]}, 0, {g[r]}")
            a(f"v_pk_mul_f32 {g[0:2]}, {g[0:2]}, {u[0:2]}")
            a(f"v_pk_mul_f32 {g[2:4]}, {g[2:4]}, {u[2:4]}")
            h = hb[hi % 4]; hi += 1
            a(f"v_cvt_pk_bf16_f32 {h[0]}, {g[0]}, {g[1]}")
            a(f"v_cvt_pk_bf16_f32 {h[1]}, {g[2]}, {g[3]}")
            a(f"s_add_u32 {so}, {st2}, {sMt[nt]}")
            a(f"buffer_store_dwordx2 {h}, {vh}, {rHF}, {so} offen")
    a.label("G1_done")
    a("s_endpgm")
    lines = a.finish(True)
    return kernel_text(name, lines, V.hi, A.hi, S.hi + 6), dict(grid=256, block=256, lds=NSLOT * STAGE_BYTES)
```

```python
from kgen import *

NSLOT = 8
PD = 7
NST = 14

def gen_G2(name=NAME + "_kernel"):
    a = Asm()
    V = Regs('v', 1, 256); S = Regs('s', 3, 100); A = Regs('a', 0, 256)
    tid = R('v', 0, 1); wg = R('s', 2, 1)
    sWD = S.alloc(2); sOUT = S.alloc(2); sWS = S.alloc(2)
    rW = S.alloc(4, 4); rHF = S.alloc(4, 4); rH1 = S.alloc(4, 4); rOUT = S.alloc(4, 4)
    sw = S.alloc(1); st = S.alloc(1); st2 = S.alloc(1); srb = S.alloc(1); sdb = S.alloc(1)
    sH = S.alloc(1); sHk = S.alloc(1); sWk = S.alloc(1); sM0 = S.alloc(1); sRow = S.alloc(1)
    a(f"s_cmp_ge_u32 {wg}, 256")
    a("s_cbranch_scc1 G2_done")
    a(f"s_load_dwordx2 {sWD}, s[0:1], {KA_WD}")
    a(f"s_load_dwordx2 {sOUT}, s[0:1], {KA_OUT}")
    a(f"s_load_dwordx2 {sWS}, s[0:1], {KA_WS}")
    n = V.alloc(1); q = V.alloc(1); lane = V.alloc(1); vt = V.alloc(1); vt2 = V.alloc(1)
    a(f"v_lshrrev_b32 {q}, 6, {tid}")
    a(f"v_readfirstlane_b32 {sw}, {q}")
    a(f"v_and_b32 {lane}, 63, {tid}")
    a(f"v_and_b32 {n}, 15, {tid}")
    a(f"v_lshrrev_b32 {q}, 4, {lane}")
    a(f"s_and_b32 {st}, {wg}, 7")
    a(f"s_lshl_b32 {srb}, {st}, 2")
    a(f"s_bfe_u32 {st}, {wg}, 0x20003")
    a(f"s_add_u32 {srb}, {srb}, {st}")
    a(f"s_lshr_b32 {sdb}, {wg}, 5")
    a(f"s_lshl_b32 {st}, {srb}, 2")
    a(f"s_add_u32 {st}, {st}, {sw}")
    a(f"s_mul_i32 {sH}, {st}, 57344")
    a(f"s_lshl_b32 {sRow}, {st}, 14")
    a(f"s_lshl_b32 {st}, {sdb}, 7")
    a(f"s_add_u32 {sRow}, {sRow}, {st}")
    vh = V.alloc(1); vdma = V.alloc(1); vo = V.alloc(1)
    a(f"v_lshlrev_b32 {vh}, 4, {lane}")
    a(f"v_lshrrev_b32 {vt}, 3, {lane}")
    a(f"v_bfe_u32 {vt2}, {vt}, 1, 2")
    a(f"v_lshlrev_b32 {vt2}, 1, {vt2}")
    a(f"v_and_b32 {vdma}, 7, {lane}")
    a(f"v_xor_b32 {vdma}, {vdma}, {vt2}")
    a(f"v_lshlrev_b32 {vdma}, 4, {vdma}")
    a(f"v_lshl_add_u32 {vdma}, {vt}, 10, {vdma}")
    a(f"s_lshl_b32 {st}, {sw}, 13")
    a(f"s_lshl_b32 {st2}, {sdb}, 7")
    a(f"s_add_u32 {st}, {st}, {st2}")
    a(f"v_add_u32 {vdma}, {st}, {vdma}")
    a(f"s_lshl_b32 {sM0}, {sw}, 10")
    vb = V.alloc(4); vs = V.alloc(4)
    rho = V.alloc(1); swz = V.alloc(1)
    a(f"v_bfe_u32 {vt}, {lane}, 2, 2")
    a(f"v_lshl_add_u32 {rho}, {q}, 2, {vt}")
    a(f"v_bfe_u32 {swz}, {rho}, 1, 2")
    a(f"v_lshlrev_b32 {swz}, 1, {swz}")
    a(f"v_and_b32 {vt}, 3, {lane}")
    a(f"v_lshrrev_b32 {vt2}, 1, {vt}")
    a(f"v_and_b32 {vt}, 1, {vt}")
    a(f"v_lshlrev_b32 {vt}, 3, {vt}")
    a(f"v_lshl_add_u32 {vt}, {vt2}, 4, {vt}")
    a(f"v_lshl_add_u32 {vt}, {rho}, 7, {vt}")
    for T in range(4):
        a(f"v_xor_b32 {vt2}, {2 * T}, {swz}")
        a(f"v_lshl_add_u32 {vb[T]}, {vt2}, 4, {vt}")
    a(f"v_lshlrev_b32 {vo}, 10, {n}")
    a(f"v_lshl_add_u32 {vo}, {q}, 3, {vo}")
    a("s_waitcnt lgkmcnt(0)")
    srd(a, rW, sWD, 0, SZ_WD)
    srd(a, rHF, sWS, WS_HF, SZ_HF)
    HR = 4 * (PD + 2)
    hreg = [A.alloc(4, 4) for _ in range(HR)]
    def issue(stg):
        slot = stg % NSLOT
        a(f"s_add_u32 {sHk}, {sH}, {stg * 4096}")
        for kk in range(4):
            s2 = 4 * stg + kk
            a(f"s_add_u32 m0, {sM0}, {slot * 16384 + kk * 4096}")
            a(f"s_mov_b32 {sWk}, {s2 * 32768}")
            a(f"buffer_load_dwordx4 {vdma}, {rW}, {sWk} offen lds")
            a(f"buffer_load_dwordx4 {hreg[s2 % HR]}, {vh}, {rHF}, {sHk} offen offset:{kk * 1024}")
    for stg in range(PD): issue(stg)
    srd(a, rH1, sWS, WS_H1, SZ_H1)
    srd(a, rOUT, sOUT, 0, SZ_X)
    acc = [V.alloc(4, 4) for _ in range(4)]
    fr = [[V.alloc(4, 4) for _ in range(4)] for _ in range(2)]
    res = [V.alloc(2) for _ in range(4)]
    def reads(s2):
        kk = s2 & 3
        out = []
        for T in range(4):
            for half in range(2):
                out.append(f"ds_read_b64_tr_b16 {fr[s2 & 1][T][2*half:2*half+2]}, {vs[T]} offset:{kk * 4096 + half * 2048}")
        return out
    issued = PD
    def stage_open(stg):
        nonlocal issued
        later = (issued - 1 - stg) * 8
        if res_issued[0]: later += 4
        a(f"s_waitcnt vmcnt({later})")
        a("s_barrier")
        for T in range(4):
            a(f"v_add_u32 {vs[T]}, {(stg % NSLOT) * 16384}, {vb[T]}")
        if issued < NST:
            issue(issued); issued += 1
        elif not res_issued[0]:
            for T in range(4):
                a(f"buffer_load_dwordx2 {res[T]}, {vo}, {rH1}, {sRow} offen offset:{32 * T}")
            res_issued[0] = True
    res_issued = [False]
    stage_open(0)
    for r_ in reads(0): a(r_)
    for s2 in range(56):
        a("s_waitcnt lgkmcnt(0)")
        nxt = []
        if s2 + 1 < 56:
            if (s2 + 1) % 4 == 0: stage_open((s2 + 1) // 4)
            nxt = reads(s2 + 1)
        for T in range(4):
            mfma(a, acc[T], fr[s2 & 1][T], hreg[s2 % HR], 0 if s2 == 0 else acc[T])
            a(nxt[2 * T]) if nxt else None
            a(nxt[2 * T + 1]) if nxt else None
    a("s_waitcnt vmcnt(0)")
    e = V.alloc(4)
    ob = [V.alloc(2) for _ in range(4)]
    for T in range(4):
        a(f"v_lshlrev_b32 {e[0]}, 16, {res[T][0]}")
        a(f"v_and_b32 {e[1]}, 0xffff0000, {res[T][0]}")
        a(f"v_lshlrev_b32 {e[2]}, 16, {res[T][1]}")
        a(f"v_and_b32 {e[3]}, 0xffff0000, {res[T][1]}")
        a(f"v_pk_add_f32 {e[0:2]}, {e[0:2]}, {acc[T][0:2]}")
        a(f"v_pk_add_f32 {e[2:4]}, {e[2:4]}, {acc[T][2:4]}")
        a(f"v_cvt_pk_bf16_f32 {ob[T][0]}, {e[0]}, {e[1]}")
        a(f"v_cvt_pk_bf16_f32 {ob[T][1]}, {e[2]}, {e[3]}")
        a(f"buffer_store_dwordx2 {ob[T]}, {vo}, {rOUT}, {sRow} offen offset:{32 * T}")
    a.label("G2_done")
    a("s_endpgm")
    lines = a.finish(True)
    return kernel_text(name, lines, V.hi, A.hi, S.hi + 6), dict(grid=256, block=256, lds=NSLOT * 16384)
```

```python
from hz import Asm
import struct

NAME = "sequential_preLN__spectral_gfnet__glu_gated_reglu__prompt"

WS_ZT  = 0x0000000
WS_WT  = 0x0200000
WS_ZI  = 0x0480000
WS_H1  = 0x0680000
WS_LN2 = 0x0880000
WS_HF  = 0x0A80000
WS_END = 0x1180000
SZ_ZT = 512 * 4096
SZ_WT = 257 * 8192
SZ_ZI = 512 * 4096
SZ_H1 = 2048 * 1024
SZ_LN2 = 2048 * 1024
SZ_HF = 128 * 56 * 1024

KA_X, KA_WR, KA_WI, KA_BX, KA_WG, KA_WU, KA_WD, KA_OUT, KA_DBG, KA_WS = [8 * i for i in range(10)]
SZ_X = 2048 * 512 * 2
SZ_W = 2048 * 257 * 2
SZ_WG = 512 * 1792 * 2
SZ_WD = 1792 * 512 * 2

def f2u(f):
    return struct.unpack('<I', struct.pack('<f', f))[0]
def fl(f):
    return '0x%08x' % f2u(f)

class Regs:
    def __init__(self, kind, start, limit):
        self.kind, self.next, self.limit = kind, start, limit
        self.names = {}
        self.hi = start
    def alloc(self, n=1, align=1, name=None):
        if n >= 2 and align < 2 and self.kind != 's': align = 2
        if n >= 2 and self.kind == 's' and align < 2: align = 2
        b = (self.next + align - 1) // align * align
        assert b + n <= self.limit, f"out of {self.kind} regs ({name})"
        self.next = b + n
        self.hi = max(self.hi, self.next)
        return R(self.kind, b, n)
    def mark(self): return self.next
    def release(self, m): self.next = m

class R:
    def __init__(self, kind, base, n):
        self.kind, self.base, self.n = kind, base, n
    def __getitem__(self, i):
        if isinstance(i, slice):
            a = i.start or 0; b = i.stop if i.stop is not None else self.n
            assert 0 <= a < b <= self.n, (a, b, self.n)
            return R(self.kind, self.base + a, b - a)
        assert 0 <= i < self.n, (i, self.n)
        return R(self.kind, self.base + i, 1)
    def __str__(self):
        if self.n == 1: return f"{self.kind}{self.base}"
        return f"{self.kind}[{self.base}:{self.base + self.n - 1}]"
    __repr__ = __str__
    def __format__(self, spec): return str(self)

def srd(a, dst, base_pair, off, size):
    if off:
        a(f"s_add_u32 {dst[0]}, {base_pair[0]}, {hex(off)}")
        a(f"s_addc_u32 {dst[1]}, {base_pair[1]}, 0")
    else:
        a(f"s_mov_b32 {dst[0]}, {base_pair[0]}")
        a(f"s_mov_b32 {dst[1]}, {base_pair[1]}")
    a(f"s_and_b32 {dst[1]}, {dst[1]}, 0xffff")
    a(f"s_mov_b32 {dst[2]}, {hex(size)}")
    a(f"s_mov_b32 {dst[3]}, 0x20000")

def kernel_text(name, lines, vgprs, agprs, sgprs, first=False):
    body = "\n".join(lines)
    acc = max(4, (vgprs + 3) // 4 * 4)
    nfv = acc + agprs if agprs else vgprs
    text = f"""
.text
.globl {name}
.p2align 8
.type {name},@function
{name}:
{body}
"""
    desc = f"""
.section .rodata,"a"
.p2align 6
.amdhsa_kernel {name}
  .amdhsa_next_free_vgpr {nfv}
  .amdhsa_next_free_sgpr {sgprs}
  .amdhsa_accum_offset {acc}
  .amdhsa_group_segment_fixed_size 0
  .amdhsa_kernarg_size 80
  .amdhsa_user_sgpr_count 2
  .amdhsa_user_sgpr_kernarg_segment_ptr 1
  .amdhsa_system_sgpr_workgroup_id_x 1
  .amdhsa_float_denorm_mode_32 3
.end_amdhsa_kernel
"""
    return text, desc

def wave_reduce_sum(a, regs, tmp=None):
    for ror in (8, 4, 2, 1):
        for r in regs:
            a(f"v_add_f32_dpp {r}, {r}, {r} row_ror:{ror} row_mask:0xf bank_mask:0xf")
    for r in regs:
        a(f"v_add_f32_dpp {r}, {r}, {r} row_bcast:15 row_mask:0xa bank_mask:0xf")
    for r in regs:
        a(f"v_add_f32_dpp {r}, {r}, {r} row_bcast:31 row_mask:0xc bank_mask:0xf")

def cmul_pk(a, ore, oim, re, im, c, s):
    a(f"v_pk_mul_f32 {ore}, {re}, {c}")
    a(f"v_pk_mul_f32 {oim}, {im}, {c}")
    a(f"v_pk_fma_f32 {ore}, {im}, {s}, {ore}")
    a(f"v_pk_fma_f32 {oim}, {re}, {s}, {oim} neg_lo:[1,0,0] neg_hi:[1,0,0]")

def mfma(a, d, x, y, c):
    a(f"v_mfma_f32_16x16x32_bf16 {d}, {x}, {y}, {c}")

def cos_sin(a, c, s, ang):
    a(f"v_cos_f32 {c}, {ang}")
    a(f"v_sin_f32 {s}, {ang}")
```

```python
import sys, importlib
from kgen import *
def build(kernels, path, header_extra=""):
    hdr = open('cdna_kernels/' + NAME + '.s.ref').read().split('\n')
    top = [l for l in hdr if l.startswith(';') and '@launch' not in l and 'Override launch' not in l and 'grid=ceil' not in l]
    lead = []
    for l in hdr:
        if not l.startswith(';'): break
        if '@launch' in l or 'Override launch' in l or 'grid=ceil' in l: continue
        lead.append(l)
    out = "\n".join(lead) + "\n"
    for (td, li, nm) in kernels:
        out += f"; @launch kernel={nm} grid=({li['grid']},1,1) block=({li['block']},1,1) lds={li['lds']}\n"
    out += header_extra
    out += '.amdgcn_target "amdgcn-amd-amdhsa--gfx950"\n'
    seen = set()
    for (td, li, nm) in kernels:
        if nm in seen: continue
        seen.add(nm); out += td[0]
    out += "\n.text\n.fill 64, 4, 0xbf800000\n"
    seen = set()
    for (td, li, nm) in kernels:
        if nm in seen: continue
        seen.add(nm); out += td[1]
    open(path, 'w').write(out)

if __name__ == '__main__':
    import ka, kb, kc
    ks = []
    which = sys.argv[2] if len(sys.argv) > 2 else 'ABC'
    if 'A' in which: td, li = ka.gen_A(); ks.append((td, li, 'ka_kernel'))
    if 'B' in which: td, li = kb.gen_B(); ks.append((td, li, 'kb_kernel'))
    if 'C' in which: td, li = kc.gen_C(); ks.append((td, li, 'kc_kernel'))
    if 'G' in which:
        import kg1; td, li = kg1.gen_G1(); ks.append((td, li, 'kg1_kernel'))
    if 'H' in which:
        import kg2; td, li = kg2.gen_G2(); ks.append((td, li, NAME + '_kernel'))
    build(ks, sys.argv[1])
```
